```python
import torch

def _softmax(x, axis=-1):
    return torch.softmax(x, dim=axis)
def _gelu(x):
    return torch.nn.functional.gelu(x, approximate="tanh")
def _silu(x):
    return torch.nn.functional.silu(x)
def _sigmoid(x):
    return torch.sigmoid(x)
def _layernorm(x, axis=-1, eps=1e-5):
    m = x.mean(dim=axis, keepdim=True)
    v = x.var(dim=axis, keepdim=True, unbiased=False)
    return (x - m) / torch.sqrt(v + eps)
def _scatter_add(tgt, idx, src, axis=0):
    return tgt.clone().index_add_(axis, idx, src)
def _segment_sum(src, seg, n):
    out = torch.zeros((n,) + src.shape[1:], dtype=src.dtype)
    return out.index_add_(0, seg, src)
def _pad(x, pw):
    flat = tuple(v for pair in reversed(pw) for v in pair)
    return torch.nn.functional.pad(x, flat)

kernel_name = 'sequential_preLN__mha_block__moe_arch_mod__prompt'

def setup_inputs():

    _w = (lambda a: (lambda t: t.to(torch.bfloat16) if t.is_floating_point() else t)(torch.as_tensor(a)))
    def _A_setup():
        B, S, D, H = 1, 2048, 448, 16
        return {
            "x": _w((lambda *s: torch.randn(*s, dtype=torch.bfloat16) * 0.05)(B, S, D)),
            "wqkv": _w((lambda *s: torch.randn(*s, dtype=torch.bfloat16) * 0.05)(D, 3 * D)),
            "wo": _w((lambda *s: torch.randn(*s, dtype=torch.bfloat16) * 0.05)(D, D)),
        }
    _A_in = _A_setup()

    def _B_setup():
        B, S, D, F, C = 1, 2048, 448, 1792, 2
        return {
            "x": _w((lambda *s: torch.randn(*s, dtype=torch.bfloat16) * 0.05)(B, S, D)),
            "w_r": _w((lambda *s: torch.randn(*s, dtype=torch.bfloat16) * 0.05)(D)),
            "w_gate": _w((lambda *s: torch.randn(*s, dtype=torch.bfloat16) * 0.05)(D, F)),
            "w_up": _w((lambda *s: torch.randn(*s, dtype=torch.bfloat16) * 0.05)(D, F)),
            "w_down": _w((lambda *s: torch.randn(*s, dtype=torch.bfloat16) * 0.05)(F, D)),
        }
    _B_in = _B_setup()

    return {
        "A_x": _A_in["x"],
        "A_wqkv": _A_in["wqkv"],
        "A_wo": _A_in["wo"],
        "B_x": _B_in["x"],
        "B_w_r": _B_in["w_r"],
        "B_w_gate": _B_in["w_gate"],
        "B_w_up": _B_in["w_up"],
        "B_w_down": _B_in["w_down"],
    }

def reference(A_x, A_wqkv, A_wo, B_x, B_w_r, B_w_gate, B_w_up, B_w_down):
    def _A_ref(x, wqkv, wo):
        B, S, D = x.shape
        H = 16
        Dh = D // H
        qkv = (lambda x, *d: x.permute(*d))((x @ wqkv).reshape(B, S, 3, H, Dh), 2, 0, 3, 1, 4)
        q, k, v = qkv[0], qkv[1], qkv[2]
        scores = torch.einsum("bhqd,bhkd->bhqk", q, k) * (Dh ** -0.5)
        p = _softmax(scores, axis=-1)
        o = torch.einsum("bhqk,bhkd->bhqd", p, v)
        return (lambda x, *d: x.permute(*d))(o, 0, 2, 1, 3).reshape(B, S, D) @ wo

    def _B_ref(x, w_r, w_gate, w_up, w_down):
        B, S, D = x.shape
        C = 2
        r = x @ w_r
        idx = torch.argsort(-r, axis=-1)[:, :C]
        idx_e = (lambda x, n, axis: torch.repeat_interleave(x, n, dim=axis))(idx.reshape(B, C, 1), D, axis=2)
        x_sel = (lambda x, i, axis: torch.take_along_dim(x, i, dim=axis))(x, idx_e, axis=1)
        g = _silu(x_sel @ w_gate)
        u = x_sel @ w_up
        y = (g * u) @ w_down
        r_sel = _sigmoid((lambda x, i, axis: torch.take_along_dim(x, i, dim=axis))(r, idx, axis=1))
        y = y * r_sel.reshape(B, C, 1)
        b_off = (torch.arange(B) * S).reshape(B, 1)
        flat_idx = (idx + b_off).reshape(B * C)
        zero = (x * 0.0).reshape(B * S, D)
        upd = _scatter_add(zero, flat_idx, y.reshape(B * C, D), axis=0)
        return x + upd.reshape(B, S, D)

    x = A_x
    h = x + _A_ref(_layernorm(x, axis=-1), A_wqkv, A_wo)
    h2 = h + _B_ref(_layernorm(h, axis=-1), B_w_r, B_w_gate, B_w_up, B_w_down)
    return h2
```

```python
import re

class Asm:
    def __init__(self):
        self.lines = []
        self.nlab = 0
    def __call__(self, s):
        for l in s.split("\n"):
            l = l.strip()
            if l:
                self.lines.append(l)
    def label(self, name):
        self.lines.append(name + ":")
    def newlabel(self, base="L"):
        self.nlab += 1
        return f"{base}_{self.nlab}"
    def text(self):
        out = []
        for l in self.lines:
            out.append(l if (l.endswith(":") or l.startswith(".")) else "  " + l)
        return "\n".join(out) + "\n"

def v(a, n=1):
    return f"v{a}" if n == 1 else f"v[{a}:{a+n-1}]"
def s(a, n=1):
    return f"s{a}" if n == 1 else f"s[{a}:{a+n-1}]"

TRANS = ("v_exp_f32", "v_log_f32", "v_rcp_f32", "v_rsq_f32", "v_sqrt_f32", "v_sin_f32", "v_cos_f32", "v_rcp_iflag_f32")
_reg = re.compile(r"(?<![\w])([vsa])(\d+)(?![\w\[])|([vsa])\[(\d+):(\d+)\]|\b(vcc_lo|vcc_hi|vcc|exec_lo|exec_hi|exec|m0)\b")

def regs_of(op):
    out = set()
    for m in _reg.finditer(op):
        if m.group(1):
            out.add(m.group(1) + m.group(2))
        elif m.group(3):
            for i in range(int(m.group(4)), int(m.group(5)) + 1):
                out.add(m.group(3) + str(i))
        else:
            n = m.group(6)
            out.add("vcc" if n.startswith("vcc") else "exec" if n.startswith("exec") else n)
    return out

def split_ops(rest):
    ops, cur, depth = [], "", 0
    for ch in rest:
        if ch == "[": depth += 1
        if ch == "]": depth -= 1
        if ch == "," and depth == 0:
            ops.append(cur.strip()); cur = ""
        else:
            cur += ch
    if cur.strip(): ops.append(cur.strip())
    return ops

class Ins:
    pass

def parse(line):
    line = line.split(";")[0].strip()
    if not line or line.endswith(":") or line.startswith("."):
        return None
    parts = line.split(None, 1)
    op = parts[0]
    rest = parts[1] if len(parts) > 1 else ""
    ops = split_ops(rest)
    I = Ins(); I.op = op; I.text = line; I.ops = ops
    I.defs = set(); I.uses = set(); I.cls = "salu"; I.srcc = set(); I.srcab = set(); I.passes = 0
    I.states = 1
    R = [regs_of(o) for o in ops]
    def alluses(k0):
        u = set()
        for r in R[k0:]: u |= r
        return u
    if op == "s_nop":
        I.states = int(ops[0], 0) + 1; I.cls = "nop"
    elif op.startswith("v_mfma") or op.startswith("v_smfmac"):
        I.cls = "mfma"
        I.passes = 8 if "32x32" in op else 4
        I.defs = R[0]; I.srcab = R[1] | R[2]
        if op.startswith("v_smfmac"):
            I.srcc = R[0]; I.srcab |= R[3]
        else:
            I.srcc = R[3]
        I.uses = I.srcab | I.srcc
    elif op.startswith("v_cmp"):
        I.cls = "valu"; I.defs = R[0]; I.uses = alluses(1)
        if op.startswith("v_cmpx"): I.defs = I.defs | {"exec"}
    elif op.startswith("v_permlane"):
        I.cls = "valu"; I.defs = R[0] | R[1]; I.uses = R[0] | R[1]
    elif op.startswith("v_"):
        I.cls = "valu"; I.defs = set(R[0]); I.uses = alluses(1)
        if op.startswith(("v_fmac", "v_dot2c", "v_pk_fmac", "v_writelane")) or "UNUSED_PRESERVE" in line or "_dpp" in op:
            I.uses |= R[0]
        if op.startswith(("v_add_co", "v_sub_co", "v_addc_co", "v_subb_co", "v_div_scale", "v_mad_u64")):
            I.defs |= R[1]; I.uses = alluses(2)
    elif op.startswith("ds_"):
        I.cls = "ds"
        if op.startswith(("ds_read", "ds_bpermute", "ds_permute", "ds_swizzle")) or "_rtn" in op:
            I.defs = R[0]; I.uses = alluses(1)
        else:
            I.uses = alluses(0)
    elif op.startswith(("buffer_", "global_")):
        I.cls = "vmem"
        lds = line.rstrip().endswith(" lds") or " lds " in line or "load_lds" in op
        I.lds = lds
        if op in ("buffer_wbl2", "buffer_inv"):
            pass
        elif "load" in op and not lds:
            I.defs = R[0]; I.uses = alluses(1)
        elif "atomic" in op and "sc0" in line:
            I.defs = R[0]; I.uses = alluses(0)
        else:
            I.uses = alluses(0)
        if lds: I.uses |= {"m0"}
        I.wide_store = ("store" in op) and op.endswith(("x3", "x4"))
        if I.wide_store:
            I.sdata = R[0] if op.startswith("buffer_") else R[1]
    elif op.startswith("s_"):
        I.cls = "salu"
        if op.startswith(("s_cmp", "s_cbranch", "s_branch", "s_waitcnt", "s_barrier", "s_sleep", "s_setprio", "s_endpgm", "s_bitcmp")):
            I.uses = alluses(0)
        else:
            if R:
                I.defs = set(R[0]); I.uses = alluses(1)
            if "saveexec" in op: I.defs |= {"exec"}
    else:
        raise ValueError("unknown op " + line)
    I.trans = op.replace("_e32", "").replace("_e64", "") in TRANS
    I.dot = op.startswith("v_dot")
    I.dpp = "_dpp" in op or " row_" in line or "quad_perm" in line
    return I

def need(P, C):
    n = 0
    def ov(a, b): return bool(a & b)
    vdefs = {r for r in P.defs if r[0] in "va" and r != "vcc"}
    sdefs = {r for r in P.defs if r[0] == "s" or r == "vcc"}
    if P.cls == "valu":
        if C.cls == "mfma" and ov(vdefs, C.uses): n = max(n, 3 if P.dot else 2)
        if P.trans and C.cls in ("valu", "mfma") and not C.trans and ov(vdefs, C.uses): n = max(n, 1)
        if C.op.startswith(("v_readlane", "v_readfirstlane")) and ov(vdefs, C.uses): n = max(n, 1)
        if C.op.startswith("v_permlane") and ov(vdefs, C.uses): n = max(n, 2)
        if C.dpp and ov(vdefs, C.uses): n = max(n, 2)
        if C.cls == "vmem" and ov(sdefs, C.uses): n = max(n, 5)
        if C.cls == "valu" and ov(sdefs, C.uses): n = max(n, 4 if C.op.startswith(("v_readlane", "v_writelane", "v_div_fmas")) else 2)
        if "exec" in P.defs:
            if C.dpp: n = max(n, 5)
            if C.cls == "mfma" or C.op.startswith(("v_permlane", "v_readlane", "v_readfirstlane", "v_writelane")): n = max(n, 4)
        if P.dot and ov(vdefs, C.uses | C.defs):
            if C.op == P.op:
                ab = set()
                for o in C.ops[1:3]: ab |= regs_of(o)
                if ov(vdefs, ab): n = max(n, 3)
            elif C.cls in ("valu", "mfma", "ds", "vmem"): n = max(n, 3)
        if ("sdwa" in P.op or "op_sel" in P.text) and C.cls == "valu" and ov(vdefs, C.uses | C.defs): n = max(n, 1)
    if P.cls == "mfma":
        full = {4: 8, 8: 12}[P.passes]
        part = {4: 6, 8: 10}[P.passes]
        if C.cls == "mfma":
            if ov(P.defs, C.srcab): n = max(n, full)
            if ov(P.defs, C.srcc):
                if not (P.defs == C.srcc and P.passes == C.passes): n = max(n, part)
        elif C.cls in ("valu",):
            if ov(P.defs, C.uses | C.defs): n = max(n, full)
            if ov(P.srcc, C.defs): n = max(n, {4: 3, 8: 7}[P.passes])
        elif C.cls in ("ds", "vmem"):
            if ov(P.defs, C.uses | C.defs): n = max(n, full)
    if P.cls == "salu" and "m0" in P.defs and C.cls == "vmem" and getattr(C, "lds", False): n = max(n, 1)
    if P.cls == "vmem" and getattr(P, "wide_store", False):
        if ov(P.sdata, C.defs): n = max(n, 2 if C.cls == "valu" else 1)
    return n

def check(lines, window=14, verbose=True):
    ins, labels = [], {}
    for l in lines:
        t = l.split(";")[0].strip()
        if t.endswith(":"):
            labels[t[:-1]] = len(ins); continue
        I = parse(l)
        if I is not None: ins.append(I)
    problems = []
    def succ(i):
        I = ins[i]
        if I.op == "s_endpgm": return []
        if I.op == "s_branch": return [labels[I.ops[0]]]
        if I.op.startswith("s_cbranch"): return [i + 1, labels[I.ops[0]]]
        return [i + 1]
    for i, P in enumerate(ins):
        if P.cls in ("nop",): continue
        if P.cls == "salu" and "m0" not in P.defs: continue
        if P.cls == "ds": continue
        stack = [(j, 0) for j in succ(i)]
        seen = {}
        while stack:
            j, d = stack.pop()
            if j >= len(ins) or d >= window: continue
            if j in seen and seen[j] <= d: continue
            seen[j] = d
            C = ins[j]
            n = need(P, C)
            if n > d:
                problems.append((i, j, n, d, P.text, C.text))
            for k in succ(j): stack.append((k, d + C.states))
    if verbose:
        for p in problems:
            print(f"HAZARD need {p[2]} have {p[3]}:\n    {p[4]}\n    {p[5]}")
    return problems
```

```python
import math
from dsl import v, s
from gen import *

WSR = f"s[{sWS}:{sWS+3}]"
DPP = "row_mask:0xf bank_mask:0xf"

def top2_row(a, A, B, T, first_b_zero=False):
    for k, r in enumerate((8, 4, 2, 1)):
        if k == 0 and first_b_zero:
            a(f"v_min_u32_dpp v{B}, v{A}, v{A} row_ror:{r} {DPP}")
            a(f"v_max_u32_dpp v{A}, v{A}, v{A} row_ror:{r} {DPP}")
            a("s_nop 1")
        else:
            a(f"v_min_u32_dpp v{T}, v{A}, v{A} row_ror:{r} {DPP}")
            a(f"v_max_u32_dpp v{A}, v{A}, v{A} row_ror:{r} {DPP}")
            a(f"v_max_u32_dpp v{B}, v{B}, v{B} row_ror:{r} {DPP}")
            a(f"v_max_u32 v{B}, v{B}, v{T}")
            if r != 1: a("s_nop 0")

def top2_cross(a, A, B, T, U):
    for sw in ("v_permlane16_swap_b32", "v_permlane32_swap_b32"):
        a(f"""v_mov_b32 v{T}, v{A}
        v_mov_b32 v{U}, v{B}
        s_nop 0
        {sw} v{T}, v{A}
        {sw} v{U}, v{B}
        v_max_u32 v{B}, v{B}, v{U}
        v_min_u32 v{U}, v{T}, v{A}
        v_max_u32 v{A}, v{T}, v{A}
        v_max_u32 v{B}, v{B}, v{U}""")

def tagcheck(a, regs, acc):
    a(f"v_xor_b32 v{acc}, s{sE}, v{regs[0]}")
    for r in regs[1:]:
        a(f"v_bitop3_b32 v{acc}, v{acc}, v{r}, s{sE} bitop3:0xf6")
    a(f"v_cmp_ne_u32 s[{sMSK}:{sMSK+1}], 0, v{acc}\ns_nop 0\ns_and_b64 s[{sMSK}:{sMSK+1}], s[{sMSK}:{sMSK+1}], exec")

def cand_front(g, name, A, B):
    a = g.a
    a(f"v_lshlrev_b32 v2, 7, v1\nv_add_u32 v2, {CAND}, v2\ns_movk_i32 s{sT0}, 0x2000")
    def loads():
        a(f"buffer_load_dwordx4 v[4:7], v2, {WSR}, 0 offen sc1")
        a(f"buffer_load_dwordx4 v[8:11], v2, {WSR}, s{sT0} offen sc1")
    g.spin(name, loads, lambda: tagcheck(a, [5, 7, 9, 11], 12))
    a(f"""v_max_u32 v{A}, v4, v8
    v_min_u32 v12, v4, v8
    v_max3_u32 v{B}, v6, v10, v12
    s_nop 0""")
    top2_row(a, A, B, 12)
    top2_cross(a, A, B, 12, 3)

def p3(g):
    a = g.a
    ACC, BF, GA, XR, WR = 112, 128, 144, 160, 168
    slots = [176 + 16 * i for i in range(5)] + [16 + 16 * i for i in range(6)]
    def wslot(st): return slots[st % 11]
    def ldw(st):
        a(f"s_add_u32 s{sT0}, s{sT1}, {st * 7 * 4096}")
        for tau in range(4):
            a(f"buffer_load_dwordx4 {v(wslot(st)+4*tau,4)}, v15, {WSR}, s{sT0} offen offset:{1024*tau} sc1")
    g.srd(sA, 12, 896)
    g.srd(sB, 20, 2048 * 896)
    a(f"""v_and_b32 v7, 15, v1
    v_mul_u32_u24 v8, 896, v7
    v_lshlrev_b32 v9, 4, v4
    s_lshl_b32 s{sT0}, s{sWV}, 7
    v_add_u32 v9, s{sT0}, v9
    v_add_u32 v8, v8, v9
    s_mul_i32 s{sT4}, s{sN}, {16*896}
    s_cmp_eq_u32 s{sWV}, 7
    s_cbranch_scc1 L_p3_now""")
    a(f"""v_mul_u32_u24 v10, 7, v1
    v_add_u32 v10, s{sWV}, v10
    v_lshlrev_b32 v10, 7, v10
    v_add_u32 v10, {FLAGW}, v10
    s_mov_b64 exec, 0x3fff""")
    g.spin("wot", lambda: a(f"buffer_load_dword v12, v10, {WSR}, 0 offen sc1"), lambda: tagcheck(a, [12], 11))
    a("s_mov_b64 exec, -1")
    a(f"""buffer_load_dwordx4 {v(XR,4)}, v8, s[{sX}:{sX+3}], s{sT4} offen
    buffer_load_dwordx4 {v(XR+4,4)}, v8, s[{sX}:{sX+3}], s{sT4} offen offset:64
    buffer_load_dwordx4 {v(WR,4)}, v9, s[{sA}:{sA+3}], 0 offen
    buffer_load_dwordx4 {v(WR+4,4)}, v9, s[{sA}:{sA+3}], 0 offen offset:64
    s_lshl_b32 s{sT1}, s{sWV}, 12
    s_add_u32 s{sT1}, s{sT1}, {WOT}""")
    for st in range(11): ldw(st)
    a("s_waitcnt vmcnt(44)")
    for j in range(8):
        a(f"v_lshlrev_b32 v{ACC+2*j}, 16, v{XR+j}\nv_and_b32 v{ACC+2*j+1}, 0xffff0000, v{XR+j}")
    a.label("L_p3_now")
    g.stamp(10)
    a(f"""s_mul_i32 s{sT2}, s{sN}, 28672
    s_add_u32 s{sT2}, s{sT2}, {OG}
    s_add_u32 s{sT3}, s{sT2}, s{sM1}
    s_add_u32 s{sK1}, s{sT3}, 8192
    s_add_u32 s{sK2}, s{sT3}, 16384
    s_lshl_b32 s{sT5}, s{sRT}, 10
    s_add_u32 s{sT5}, s{sT5}, s{sT2}
    s_add_u32 s{sT5}, s{sT5}, 24576
    v_lshrrev_b32 v10, 5, v1
    v_lshl_add_u32 v10, v10, 8, v5
    v_and_b32 v11, 1, v4
    v_lshl_add_u32 v10, v11, 3, v10
    s_lshl_b32 s{sT0}, s{sRT}, 9
    v_add_u32 v11, s{sT0}, v10
    s_lshl_b32 s{sT0}, s{sWV}, 9
    v_add_u32 v10, s{sT0}, v10
    v_mov_b32 v13, 0x3f803f80""")
    def loads():
        for i, so in enumerate((sT3, sK1, sK2, sT5)):
            a(f"buffer_load_dwordx4 {v(GA+4*i,4)}, v15, {WSR}, s{so} offen sc1")
    g.spin("og", loads, lambda: tagcheck(a, [GA + 2*i + 1 for i in range(8)], 12))
    for i in range(4):
        a(f"v_mov_b32 v{GA+4*i+1}, v{GA+4*i+2}")
        if i < 3: a(f"ds_write_b64 v10, {v(GA+4*i,2)} offset:{4096*i}")
        else: a(f"ds_write_b64 v11, {v(GA+4*i,2)} offset:{4096*3}")
    a(f"""v_lshl_add_u32 v3, v7, 2, v4
    v_lshlrev_b32 v3, 5, v3
    v_add_u32 v3, 16384, v3
    s_lshl_b32 s{sT0}, s{sWV}, 2
    v_add_u32 v2, s{sT0}, v3
    v_mov_b32 v{GA}, 0
    s_waitcnt lgkmcnt(0)
    s_barrier""")
    g.stamp(11)
    a(f"s_cmp_eq_u32 s{sWV}, 7\ns_cbranch_scc1 L_p3_skip")
    for st in range(3): a(f"ds_read_b128 {v(BF+4*st,4)}, v15 offset:{1024*st}")
    for i in range(1, 8): a(f"v_mov_b32 v{GA+i}, 0")
    for j in range(8): a(f"v_dot2c_f32_bf16 v{GA+6+(j&1)}, v{WR+j}, v13")
    for st in range(14):
        if st + 3 < 14: a(f"ds_read_b128 {v(BF+4*((st+3)%4),4)}, v15 offset:{1024*(st+3)}")
        w = f"s_waitcnt lgkmcnt({min(3, 13-st)})"
        if st >= 11: w += f" vmcnt({4*(13-st)})"
        a(w)
        for tau in range(4):
            a(f"v_mfma_f32_16x16x32_bf16 {v(ACC+4*tau,4)}, {v(wslot(st)+4*tau,4)}, {v(BF+4*(st%4),4)}, {v(ACC+4*tau,4)}")
        if st < 3: ldw(st + 11)
    a("s_nop 4")
    H = 160
    for j in range(8):
        a(f"v_cvt_pk_bf16_f32 v{H+j}, v{ACC+2*j}, v{ACC+2*j+1}")
        if j in (1, 3): a("s_nop 0")
    for j in range(8):
        a(f"v_dot2c_f32_bf16 v{GA+(j&1)}, v{H+j}, v13")
        a(f"v_dot2c_f32_bf16 v{GA+2+(j&1)}, v{H+j}, v{H+j}")
        a(f"v_dot2c_f32_bf16 v{GA+4+(j&1)}, v{H+j}, v{WR+j}")
    a(f"""v_add_f32 v{GA+6}, v{GA+6}, v{GA+7}
    v_add_f32 v{GA}, v{GA}, v{GA+1}
    v_add_f32 v{GA+2}, v{GA+2}, v{GA+3}
    s_nop 0
    v_add_f32 v{GA+4}, v{GA+4}, v{GA+5}
    v_permlane32_swap_b32 v{GA}, v{GA+2}
    s_nop 0
    v_permlane32_swap_b32 v{GA+4}, v{GA+6}
    v_add_f32 v{GA}, v{GA}, v{GA+2}
    v_add_f32 v{GA+4}, v{GA+4}, v{GA+6}
    s_nop 1
    v_permlane16_swap_b32 v{GA}, v{GA+4}
    v_add_f32 v{GA}, v{GA}, v{GA+4}""")
    a.label("L_p3_skip")
    a(f"""ds_write_b32 v2, v{GA}
    s_waitcnt lgkmcnt(0)
    s_barrier
    ds_read_b128 {v(GA,4)}, v3
    ds_read_b128 {v(GA+4,4)}, v3 offset:16""")
    g.stamp(12)
    a(f"""s_lshl_b32 s{sT0}, s{sN}, 4
    s_sub_u32 s{sT0}, 2047, s{sT0}
    v_sub_u32 v10, s{sT0}, v7
    v_lshlrev_b32 v10, 1, v10
    s_waitcnt lgkmcnt(0)
    v_pk_add_f32 {v(GA,2)}, {v(GA,2)}, {v(GA+2,2)}
    v_pk_add_f32 {v(GA+4,2)}, {v(GA+4,2)}, {v(GA+6,2)}
    v_pk_add_f32 {v(GA,2)}, {v(GA,2)}, {v(GA+4,2)}
    v_add_f32 v{GA}, v{GA}, v{GA+1}
    v_mov_b32 v{GA+1}, v{GA}
    s_nop 1
    v_permlane32_swap_b32 v{GA+1}, v{GA}
    v_mov_b32 v{GA+2}, v{GA+1}
    v_mov_b32 v{GA+3}, v{GA}
    s_nop 0
    v_permlane16_swap_b32 v{GA+1}, v{GA+2}
    v_permlane16_swap_b32 v{GA}, v{GA+3}""")
    M, R = GA + 4, GA + 5
    g.ln_stats(GA + 1, GA, M, R, GA + 6)
    KEY, KA, KB = GA + 7, GA + 8, GA + 9
    a(f"""v_fma_f32 v{GA+2}, -v{M}, v{GA+3}, v{GA+2}
    v_mul_f32 v{GA+2}, v{R}, v{GA+2}
    v_mul_f32 v{M}, v{M}, v{R}
    v_cvt_pk_bf16_f32 v{GA+2}, v{GA+2}, v{GA+2}
    v_ashrrev_i32 v{GA+3}, 31, v{GA+2}
    v_or_b32 v{GA+3}, 0x80000000, v{GA+3}
    v_xor_b32 v{GA+2}, v{GA+2}, v{GA+3}
    v_and_b32 v{GA+2}, 0xffff0000, v{GA+2}
    v_or_b32 v{KEY}, v{GA+2}, v10
    v_mov_b32 v{KA}, v{KEY}
    s_nop 1""")
    top2_row(a, KA, KB, GA + 10, first_b_zero=True)
    a(f"s_cmp_lg_u32 s{sWV}, 7\ns_cbranch_scc1 L_p3_rows")
    a(f"""v_mov_b32 v{GA+12}, v{KA}
    v_mov_b32 v{GA+13}, s{sE}
    v_or_b32 v{GA+14}, 1, v{KB}
    v_mov_b32 v{GA+15}, s{sE}
    v_mov_b32 v2, 0
    s_lshl_b32 s{sT0}, s{sN}, 7
    s_add_u32 s{sT0}, s{sT0}, {CAND}
    s_mov_b64 exec, 1
    buffer_store_dwordx4 {v(GA+12,4)}, v2, {WSR}, s{sT0} offen sc1
    s_mov_b64 exec, -1""")
    g.stamp(13)
    a("s_branch L_fin")
    a.label("L_p3_rows")
    HNF, PK = 16, 32
    a(f"""v_cmp_eq_u32 s[{sMSK}:{sMSK+1}], v{KEY}, v{KA}
    v_cmp_eq_u32 vcc, v{KEY}, v{KB}
    v_lshlrev_b32 v2, 4, v4
    s_lshl_b32 s{sT0}, s{sWV}, 8
    v_add_u32 v2, s{sT0}, v2
    v_add_u32 v3, 2048, v2
    v_cndmask_b32 v2, v2, v3, vcc
    s_or_b64 s[{sMSK}:{sMSK+1}], s[{sMSK}:{sMSK+1}], vcc
    s_lshl_b32 s{sT2}, s{sN}, 12
    s_add_u32 s{sT3}, s{sT2}, {HH}
    s_add_u32 s{sT2}, s{sT2}, {HN}""")
    for e in range(16): a(f"v_fma_f32 v{HNF+e}, v{ACC+e}, v{R}, -v{M}")
    for j in range(8):
        a(f"v_cvt_pk_bf16_f32 v{PK+2*j}, v{HNF+2*j}, v{HNF+2*j+1}\nv_mov_b32 v{PK+2*j+1}, s{sE}")
    a(f"s_mov_b64 exec, s[{sMSK}:{sMSK+1}]")
    for i in range(4): a(f"buffer_store_dwordx4 {v(PK+4*i,4)}, v2, {WSR}, s{sT2} offen offset:{64*i} sc1")
    a("s_mov_b64 exec, -1")
    for e in range(16): a(f"v_add_f32 v{HNF+e}, v{ACC+e}, v{HNF+e}")
    OUTR = 48
    for j in range(8): a(f"v_cvt_pk_bf16_f32 v{OUTR+j}, v{HNF+2*j}, v{HNF+2*j+1}")
    a(f"""buffer_store_dwordx4 {v(OUTR,4)}, v8, s[{sB}:{sB+3}], s{sT4} offen sc1
    buffer_store_dwordx4 {v(OUTR+4,4)}, v8, s[{sB}:{sB+3}], s{sT4} offen offset:64 sc1""")
    for j in range(8): a(f"v_mov_b32 v{PK+2*j}, v{H+j}")
    a(f"s_waitcnt vmcnt(0)\ns_mov_b64 exec, s[{sMSK}:{sMSK+1}]")
    for i in range(4): a(f"buffer_store_dwordx4 {v(PK+4*i,4)}, v2, {WSR}, s{sT3} offen offset:{64*i} sc1")
    a("s_mov_b64 exec, -1")
    g.stamp(13)
    a("s_branch L_fin")

def rowoff(a, d, key):
    a(f"""v_not_b32 v{d}, v{key}
    v_bfe_u32 v{d}, v{d}, 5, 7
    v_and_b32 v12, 1, v{key}
    v_lshl_add_u32 v{d}, v{d}, 1, v12
    v_lshlrev_b32 v{d}, 11, v{d}""")

def ffn1(g):
    a = g.a
    LG, LU, LH = 0, 57344, 114688
    AF, BF, D = 16, 72, 128
    g.srd(sA, 14, 448 * 3584)
    g.srd(sB, 16, 448 * 3584)
    a(f"""s_lshl_b32 s{sT4}, s{sP}, 2
    s_add_u32 s{sT4}, s{sT4}, s{sRB}
    s_lshl_b32 s{sT0}, s{sT4}, 7
    s_mul_i32 s{sT1}, s{sWV}, {8*3584}
    s_add_u32 s{sT0}, s{sT0}, s{sT1}
    s_and_b32 s{sT1}, s{sWV}, 1
    s_lshl_b32 s{sT1}, s{sT1}, 2
    v_lshrrev_b32 v2, 3, v1
    v_mul_u32_u24 v2, 3584, v2
    v_and_b32 v3, 7, v1
    v_xor_b32 v3, v3, v4
    v_xor_b32 v3, s{sT1}, v3
    v_lshl_add_u32 v2, v3, 4, v2
    v_add_u32 v2, s{sT0}, v2
    v_xor_b32 v3, 32, v2""")
    for m in range(7):
        a(f"""s_add_u32 m0, s{sM1}, {LG + 8192*m}
        s_mov_b32 s{sT0}, {m*64*3584}
        buffer_load_dwordx4 v2, s[{sA}:{sA+3}], s{sT0} offen lds
        s_add_u32 m0, s{sM1}, {LU + 8192*m}
        s_nop 0
        buffer_load_dwordx4 v3, s[{sB}:{sB+3}], s{sT0} offen lds""")
    a(f"""v_bfe_u32 v6, v1, 2, 2
    v_lshl_add_u32 v7, v4, 3, v6
    v_lshlrev_b32 v7, 7, v7
    v_and_b32 v8, 1, v4
    v_lshlrev_b32 v8, 2, v8
    v_lshrrev_b32 v6, 1, v6
    v_or_b32 v8, v8, v6
    v_and_b32 v9, 2, v1
    v_xor_b32 v8, v8, v9
    v_xor_b32 v8, s{sWV}, v8
    v_lshl_add_u32 v7, v8, 4, v7
    v_and_b32 v8, 1, v1
    v_lshl_add_u32 v7, v8, 3, v7
    v_mul_u32_u24 v9, {LU // 2}, v9
    v_add_u32 v6, v7, v9
    v_xor_b32 v7, 32, v6
    v_mul_u32_u24 v13, 896, v8
    v_lshl_add_u32 v13, v4, 4, v13
    v_add_u32 v13, {LH}, v13
    s_waitcnt vmcnt(0)
    s_barrier""")
    for st in range(14):
        a(f"ds_read_b64_tr_b16 {v(AF+4*st,2)}, v6 offset:{4096*st}")
        a(f"ds_read_b64_tr_b16 {v(AF+4*st+2,2)}, v7 offset:{4096*st+512}")
    a(f"""s_lshl_b32 s{sT0}, s{sT4}, 9
    s_lshl_b32 s{sT1}, s{sWV}, 6
    s_add_u32 s{sT0}, s{sT0}, s{sT1}
    s_add_u32 s{sT5}, s{sT0}, {ACT}
    v_and_b32 v2, 1, v4
    v_lshl_add_u32 v14, v2, 5, v5
    v_lshrrev_b32 v2, 1, v4
    v_lshl_add_u32 v14, v2, 3, v14
    v_mov_b32 v{D+5}, s{sE}
    s_waitcnt lgkmcnt(0)""")
    g.stamp(10)
    a(f"s_cmp_lg_u32 s{sWV}, 0\ns_cbranch_scc1 L_f1_wait")
    KA, KB = 140, 141
    a(f"""v_bfe_u32 v2, v1, 3, 1
    v_lshl_add_u32 v2, v4, 1, v2
    v_and_b32 v3, 3, v1
    v_lshl_add_u32 v2, v2, 2, v3
    v_bfe_u32 v3, v1, 2, 1
    v_lshl_add_u32 v2, v2, 1, v3
    v_lshlrev_b32 v2, 3, v2
    v_add_u32 v142, {LH}, v2""")
    cand_front(g, "c1", KA, KB)
    g.stamp(11)
    rowoff(a, 2, KA); rowoff(a, 3, KB)
    a(f"""v_add_u32 v2, v2, v15
    v_add_u32 v3, v3, v15
    s_mov_b32 s{sT0}, {HN}""")
    GA = 144
    for i in (5, 7, 13, 15): a(f"v_mov_b32 v{GA+i}, s{sE}")
    def loads():
        a(f"""buffer_load_dwordx4 {v(GA,4)}, v2, {WSR}, s{sT0} offen sc1
        buffer_load_dwordx4 {v(GA+8,4)}, v3, {WSR}, s{sT0} offen sc1
        s_mov_b32 exec_hi, 0xffff
        buffer_load_dwordx4 {v(GA+4,4)}, v2, {WSR}, s{sT0} offen offset:1024 sc1
        buffer_load_dwordx4 {v(GA+12,4)}, v3, {WSR}, s{sT0} offen offset:1024 sc1
        s_mov_b32 exec_hi, -1""")
    g.spin("hn1", loads, lambda: tagcheck(a, [GA + 2*i + 1 for i in range(8)], 12))
    for i in range(4): a(f"v_mov_b32 v{GA+4*i+1}, v{GA+4*i+2}")
    a(f"""ds_write_b64 v142, {v(GA,2)}
    ds_write_b64 v142, {v(GA+8,2)} offset:896
    s_mov_b32 exec_hi, 0xffff
    ds_write_b64 v142, {v(GA+4,2)} offset:512
    ds_write_b64 v142, {v(GA+12,2)} offset:{896+512}
    s_mov_b32 exec_hi, -1
    s_waitcnt lgkmcnt(0)""")
    a.label("L_f1_wait")
    a("s_barrier")
    g.stamp(12)
    for st in range(14): a(f"ds_read_b128 {v(BF+4*st,4)}, v13 offset:{64*st}")
    for st in range(14):
        a(f"s_waitcnt lgkmcnt({13-st})")
        a(f"v_mfma_f32_16x16x32_bf16 {v(D,4)}, {v(AF+4*st,4)}, {v(BF+4*st,4)}, {'0' if st == 0 else v(D,4)}")
    nl2e = hx(f32(-math.log2(math.e)))
    a(f"""s_mov_b32 s{sMSK}, 0x00030003
    s_mov_b32 s{sMSK+1}, 0x00030003
    s_nop 5
    v_permlane32_swap_b32 v{D}, v{D+2}
    v_permlane32_swap_b32 v{D+1}, v{D+3}
    v_mul_f32 v2, {nl2e}, v{D}
    v_mul_f32 v3, {nl2e}, v{D+1}
    v_exp_f32 v2, v2
    v_exp_f32 v3, v3
    v_mul_f32 v{D}, v{D}, v{D+2}
    v_add_f32 v2, 1.0, v2
    v_add_f32 v3, 1.0, v3
    v_rcp_f32 v2, v2
    v_rcp_f32 v3, v3
    v_mul_f32 v{D+1}, v{D+1}, v{D+3}
    v_mul_f32 v{D}, v{D}, v2
    v_mul_f32 v{D+1}, v{D+1}, v3
    v_cvt_pk_bf16_f32 v{D+4}, v{D}, v{D+1}
    s_mov_b64 exec, s[{sMSK}:{sMSK+1}]
    buffer_store_dwordx2 {v(D+4,2)}, v14, {WSR}, s{sT5} offen sc1
    s_mov_b64 exec, -1""")
    g.stamp(13)
    a("s_branch L_fin")

def ffn2(g):
    a = g.a
    LA, LR = 65536, 81920
    AF, BF, D = 16, 48, 128
    g.srd(sA, 18, 1792 * 896)
    g.srd(sB, 20, 2048 * 896)
    a(f"""s_lshl_b32 s{sT4}, s{sP}, 2
    s_add_u32 s{sT4}, s{sT4}, s{sRB}
    s_sub_u32 s{sT4}, s{sT4}, 4
    s_lshl_b32 s{sT0}, s{sT4}, 5
    s_mul_i32 s{sT1}, s{sWV}, {224*896}
    s_add_u32 s{sT0}, s{sT0}, s{sT1}
    s_mul_i32 s{sT2}, s{sWV}, 7168
    v_lshrrev_b32 v2, 1, v1
    v_mul_u32_u24 v2, 896, v2
    v_and_b32 v8, 1, v1
    v_lshl_add_u32 v2, v8, 4, v2
    v_add_u32 v2, s{sT0}, v2""")
    for m in range(7):
        a(f"""s_add_u32 m0, s{sT2}, {1024*m}
        s_mov_b32 s{sT0}, {m*32*896}
        buffer_load_dwordx4 v2, s[{sA}:{sA+3}], s{sT0} offen lds""")
    a(f"""v_bfe_u32 v6, v1, 2, 2
    v_lshl_add_u32 v6, v4, 3, v6
    v_and_b32 v7, 3, v1
    v_lshl_add_u32 v6, v6, 2, v7
    v_lshlrev_b32 v6, 3, v6
    v_add_u32 v6, s{sT2}, v6
    s_add_u32 s{sT0}, s{sM1}, {LA}
    v_lshlrev_b32 v13, 9, v8
    v_lshrrev_b32 v7, 1, v1
    v_lshl_add_u32 v14, v7, 3, v13
    v_add_u32 v14, s{sT0}, v14
    v_lshl_add_u32 v13, v4, 4, v13
    v_add_u32 v13, s{sT0}, v13
    s_waitcnt vmcnt(0)""")
    for st in range(7):
        a(f"ds_read_b64_tr_b16 {v(AF+4*st,2)}, v6 offset:{1024*st}")
        a(f"ds_read_b64_tr_b16 {v(AF+4*st+2,2)}, v6 offset:{1024*st+128}")
    a("s_waitcnt lgkmcnt(0)")
    g.stamp(10)
    a(f"s_cmp_lg_u32 s{sWV}, 7\ns_cbranch_scc1 L_f2_act")
    KA, KB, KEY, SIG, OA = 140, 141, 142, 143, 139
    a(f"v_mov_b32 v138, v4")
    cand_front(g, "c2", KA, KB)
    g.stamp(11)
    a(f"""v_mov_b32 v4, v138
    v_and_b32 v8, 1, v1
    v_cmp_eq_u32 vcc, 1, v8
    s_lshr_b32 s{sT0}, s{sT4}, 1
    s_lshl_b32 s{sT0}, s{sT0}, 3
    v_cndmask_b32 v{KEY}, v{KA}, v{KB}, vcc
    s_and_b32 s{sT1}, s{sT4}, 1
    s_lshl_b32 s{sT1}, s{sT1}, 1
    s_add_u32 s{sT0}, s{sT0}, s{sT1}""")
    rowoff(a, 2, KEY)
    a(f"""v_and_b32 v3, 1, v4
    v_lshrrev_b32 v5, 1, v4
    v_lshl_add_u32 v3, v3, 2, v5
    v_add_u32 v3, s{sT0}, v3
    v_lshl_add_u32 v2, v3, 4, v2
    s_mov_b32 s{sT0}, {HN}
    s_mov_b32 s{sT1}, {HH}""")
    GA = 144
    def loads():
        a(f"""buffer_load_dwordx4 {v(GA,4)}, v2, {WSR}, s{sT0} offen sc1
        buffer_load_dwordx4 {v(GA+4,4)}, v2, {WSR}, s{sT1} offen sc1""")
    g.spin("hn2", loads, lambda: tagcheck(a, [GA + 2*i + 1 for i in range(4)], 12))
    nl2e = hx(f32(-math.log2(math.e)))
    for k in range(4):
        a(f"v_lshlrev_b32 v{152+2*k}, 16, v{GA+2*k}\nv_and_b32 v{153+2*k}, 0xffff0000, v{GA+2*k}")
    a(f"""v_not_b32 v3, v{KEY}
    v_ashrrev_i32 v5, 31, v3
    v_or_b32 v5, 0x80000000, v5
    v_xor_b32 v5, v5, v{KEY}
    v_and_b32 v5, 0xffff0000, v5
    v_mul_f32 v5, {nl2e}, v5
    v_exp_f32 v5, v5
    v_bfe_u32 v3, v3, 1, 11
    v_add_f32 v5, 1.0, v5
    v_rcp_f32 v5, v5
    v_mul_u32_u24 v{OA}, 896, v3
    v_lshl_add_u32 v{OA}, v4, 3, v{OA}""")
    g.bf16r(SIG, 5)
    a.label("L_f2_act")
    GB = 160
    a(f"""s_mul_i32 s{sT0}, s{sWV}, 1792
    s_add_u32 s{sT0}, s{sT0}, {ACT}
    v_mov_b32 v{GB+5}, s{sE}
    v_mov_b32 v{GB+7}, s{sE}""")
    def loads2():
        a(f"""buffer_load_dwordx4 {v(GB,4)}, v15, {WSR}, s{sT0} offen sc1
        s_mov_b32 exec_hi, 0xffff
        buffer_load_dwordx4 {v(GB+4,4)}, v15, {WSR}, s{sT0} offen offset:1024 sc1
        s_mov_b32 exec_hi, -1""")
    g.spin("act", loads2, lambda: tagcheck(a, [GB + 2*i + 1 for i in range(4)], 12))
    g.stamp(12)
    a(f"""v_mov_b32 v{GB+1}, v{GB+2}
    v_mov_b32 v{GB+5}, v{GB+6}
    ds_write_b64 v14, {v(GB,2)}
    ds_write_b64 v14, {v(GB+4,2)} offset:256
    s_lshl_b32 s{sT0}, s{sWV}, 1
    s_lshl_b32 s{sMSK}, 0x00030003, s{sT0}
    s_mov_b32 s{sMSK+1}, s{sMSK}
    v_add_u32 v2, {LR}, v15
    s_waitcnt lgkmcnt(0)""")
    for st in range(7): a(f"ds_read_b128 {v(BF+4*st,4)}, v13 offset:{64*st}")
    for st in range(7):
        a(f"s_waitcnt lgkmcnt({6-st})")
        a(f"v_mfma_f32_16x16x32_bf16 {v(D,4)}, {v(AF+4*st,4)}, {v(BF+4*st,4)}, {'0' if st == 0 else v(D,4)}")
    a(f"""s_mov_b64 exec, s[{sMSK}:{sMSK+1}]
    s_nop 6
    ds_write_b128 v2, {v(D,4)}
    s_mov_b64 exec, -1
    s_waitcnt lgkmcnt(0)
    s_barrier
    s_cmp_lg_u32 s{sWV}, 7
    s_cbranch_scc1 L_fin
    ds_read_b128 {v(D,4)}, v2
    s_lshl_b32 s{sT0}, s{sT4}, 5
    s_mov_b32 s{sMSK}, 0x00030003
    s_mov_b32 s{sMSK+1}, 0x00030003
    s_waitcnt lgkmcnt(0)""")
    for r in (8, 4, 2):
        for e in range(4): a(f"v_add_f32_dpp v{D+e}, v{D+e}, v{D+e} row_ror:{r} {DPP}")
    for e in range(4): a(f"v_fma_f32 v{D+e}, v{D+e}, v{SIG}, v{152+e}")
    for e in range(4): a(f"v_add_f32 v{D+e}, v{D+e}, v{156+e}")
    a(f"""v_cvt_pk_bf16_f32 v{D+4}, v{D}, v{D+1}
    v_cvt_pk_bf16_f32 v{D+5}, v{D+2}, v{D+3}
    s_mov_b64 exec, s[{sMSK}:{sMSK+1}]
    buffer_store_dwordx2 {v(D+4,2)}, v{OA}, s[{sB}:{sB+3}], s{sT0} offen sc1
    s_mov_b64 exec, 1
    s_cmp_lg_u32 s{sT4}, 0
    s_cbranch_scc1 L_f2_noep
    v_mov_b32 v2, {EPOCH}
    v_mov_b32 v3, s{sE}
    buffer_store_dword v3, v2, {WSR}, 0 offen sc1""")
    a.label("L_f2_noep")
    a("s_mov_b64 exec, -1")
    g.stamp(13)
    if g.diag:
        a("s_waitcnt vmcnt(0)")
        g.stamp(14)

def tail(g):
    a = g.a
    a(f"s_cmp_eq_u32 s{sTY}, 1\ns_cbranch_scc1 L_other")
    p3(g)
    a.label("L_other")
    a(f"""s_cmp_ge_u32 s{sP}, 7
    s_cbranch_scc1 L_fin
    s_cmp_ge_u32 s{sRB}, 8
    s_cbranch_scc1 L_fin
    s_cmp_ge_u32 s{sRB}, 4
    s_cbranch_scc1 L_ffn2""")
    ffn1(g)
    a.label("L_ffn2")
    ffn2(g)
```

```python
import sys, struct, math
from dsl import Asm, v, s, check

NAME = "sequential_preLN__mha_block__moe_arch_mod__prompt"

def f32(x): return struct.unpack("<I", struct.pack("<f", x))[0]
def hx(x): return hex(x & 0xffffffff)

EPOCH = 0
XTAB  = 0x1000
FLAGA = 0x9000
FLAGW = 0x11000
CAND  = 0x15000
ACT   = 0x19000
HN    = 0x20000
HH    = 0xA0000
WOT   = 0x120000
OG    = 0x190000
KV    = 0x600000
DIAG  = 0xA00000
WS_BYTES = 0xC00000

LX = 0; LW = 114688
def slot(i): return LW + 8192 * i
LWQ = slot(1); LSC = 151552
LST = LSC; LCS = LSC + 2048; LCSQ = LSC + 3072
LQF = 131072; LSLOW = 139264
LDS_BYTES = 163840

sX, sW, sWS, sA, sB = 28, 32, 36, 40, 44
sE, sWV, sRB, sH, sP, sTY, sRT, sCT, sXCC, sN = 48, 49, 50, 51, 52, 53, 54, 55, 56, 57
sT0, sT1, sT2, sT3, sT4, sT5 = 58, 59, 60, 61, 62, 63
sKV = 64
sM0 = 72
sM1 = 73
sFAST = 74
sSPIN = 75
sMSK = 76
sMS2 = 78
sTASK = 80
sK1, sK2 = 81, 82
sDG = 84
SPIN_MAX = 1 << 18
EINC = '0x9e3779b9'

class G:
    def __init__(self, diag=False, stop=99, fast=True, force_slow=False):
        self.a = Asm(); self.diag = diag; self.stop = stop; self.fast = fast; self.force_slow = force_slow
        self.nst = 0

    def stamp(self, i):
        if self.diag:
            self.a(f"s_memrealtime s[100:101]\ns_waitcnt lgkmcnt(0)\ns_mov_b32 s{sDG+i}, s100")

    def srd(self, r, ptr, size):
        self.a(f"s_mov_b32 s{r}, s{ptr}\ns_mov_b32 s{r+1}, s{ptr+1}\ns_mov_b32 s{r+2}, {hx(size)}\ns_mov_b32 s{r+3}, 0x20000")

    def bf16r(self, d, src):
        self.a(f"v_cvt_pk_bf16_f32 v{d}, v{src}, v{src}\nv_lshlrev_b32 v{d}, 16, v{d}")

    def ln_stats(self, vsx, vsq, vm, vr, t):
        a = self.a
        a(f"v_mul_f32 v{vm}, {hx(f32(1/448))}, v{vsx}")
        a(f"v_mul_f32 v{t}, {hx(f32(1/448))}, v{vsq}")
        a(f"v_fma_f32 v{t}, -v{vm}, v{vm}, v{t}")
        a(f"v_max_f32 v{t}, 0, v{t}")
        self.bf16r(t, t)
        a(f"v_add_f32 v{t}, {hx(f32(1e-5))}, v{t}")
        self.bf16r(t, t)
        a(f"v_sqrt_f32 v{t}, v{t}")
        self.bf16r(vm, vm)
        self.bf16r(t, t)
        a(f"v_rcp_f32 v{vr}, v{t}")
        a("s_nop 0")

    def prologue(self):
        a = self.a
        a(f"""s_cmp_ge_u32 s2, 256
        s_cbranch_scc1 L_end
        s_load_dwordx16 s[4:19], s[0:1], 0
        s_load_dwordx4 s[20:23], s[0:1], 64
        s_load_dwordx2 s[24:25], s[0:1], 80""")
        if self.diag:
            a("s_memrealtime s[100:101]")
        a(f"""v_lshrrev_b32 v2, 6, v0
        v_and_b32 v1, 63, v0
        s_and_b32 s{sP}, s2, 7
        v_readfirstlane_b32 s{sWV}, v2
        s_lshr_b32 s{sT0}, s2, 3
        s_lshr_b32 s{sRB}, s{sT0}, 1
        s_and_b32 s{sTY}, s{sT0}, 1
        s_lshl_b32 s{sH}, s{sP}, 1
        s_add_u32 s{sH}, s{sH}, s{sTY}
        s_lshl_b32 s{sN}, s{sRB}, 3
        s_add_u32 s{sN}, s{sN}, s{sP}
        s_and_b32 s{sRT}, s{sWV}, 3
        s_lshr_b32 s{sCT}, s{sWV}, 2
        s_lshl_b32 s{sM0}, s{sWV}, 11
        s_lshl_b32 s{sM1}, s{sWV}, 10""")
        a(f"""s_lshl_b32 s{sT0}, s{sRB}, 7
        s_lshl_b32 s{sT1}, s{sWV}, 4
        s_add_u32 s{sT0}, s{sT0}, s{sT1}
        s_mul_i32 s{sT0}, s{sT0}, 896
        v_lshrrev_b32 v2, 3, v1
        v_and_b32 v3, 7, v1
        v_lshrrev_b32 v8, 4, v1
        v_mul_u32_u24 v4, 896, v2
        v_xor_b32 v9, v3, v8
        v_lshl_add_u32 v4, v9, 4, v4
        v_add_u32 v4, s{sT0}, v4
        v_xor_b32 v5, 64, v4
        v_add_u32 v5, {8*896}, v5""")
        a(f"""s_mul_i32 s{sT0}, s{sWV}, {8*2688}
        s_mul_i32 s{sT1}, s{sTY}, 896
        s_mul_i32 s{sT2}, s{sP}, 112
        s_add_u32 s{sT0}, s{sT0}, s{sT1}
        s_add_u32 s{sT0}, s{sT0}, s{sT2}
        s_add_u32 s{sT0}, s{sT0}, 896
        v_and_b32 v9, 1, v8
        v_lshlrev_b32 v9, 2, v9
        v_xor_b32 v9, v3, v9
        v_min_u32 v9, 6, v9
        v_mul_u32_u24 v6, 2688, v2
        v_lshl_add_u32 v6, v9, 4, v6
        v_add_u32 v6, s{sT0}, v6
        s_waitcnt lgkmcnt(0)""")
        if self.diag:
            a(f"s_mov_b32 s{sDG}, s100")
        a(f"s_load_dword s{sE}, s[24:25], {EPOCH}")
        self.srd(sX, 4, 2048 * 896)
        self.srd(sW, 6, 448 * 2688)
        for c in range(7):
            a(f"""s_add_u32 m0, s{sM0}, {LX + c*16384}
            s_movk_i32 s{sT0}, {c*128}
            buffer_load_dwordx4 v4, s[{sX}:{sX+3}], s{sT0} offen lds
            s_add_u32 m0, s{sM0}, {LX + c*16384 + 1024}
            s_nop 0
            buffer_load_dwordx4 v5, s[{sX}:{sX+3}], s{sT0} offen lds""")
            if c < 6:
                a(f"""s_add_u32 m0, s{sM1}, {slot(c)}
                s_mov_b32 s{sT0}, {c*64*2688}
                buffer_load_dwordx4 v6, s[{sW}:{sW+3}], s{sT0} offen lds""")
        self.srd(sWS, 24, WS_BYTES)
        a(f"""s_getreg_b32 s{sXCC}, hwreg(HW_REG_XCC_ID, 0, 4)
        s_lshl_b32 s{sT2}, s{sH}, 4
        s_add_u32 s{sT2}, s{sT2}, s{sRB}
        s_lshl_b32 s{sT2}, s{sT2}, 7""")
        a(f"""s_mul_i32 s{sT0}, s{sWV}, {16*2688}
        s_mul_i32 s{sT1}, s{sH}, 56
        s_and_b32 s{sT1}, s{sT1}, 0xfff0
        s_add_u32 s{sT0}, s{sT0}, s{sT1}
        v_lshrrev_b32 v2, 2, v1
        v_and_b32 v3, 3, v1
        v_mul_u32_u24 v7, 2688, v2
        v_lshl_add_u32 v7, v3, 4, v7
        v_add_u32 v7, s{sT0}, v7""")
        a(f"""s_lshl_b32 s{sT0}, s{sCT}, 1
        s_xor_b32 s{sT3}, s{sT0}, s{sRT}
        v_and_b32 v27, 31, v1
        v_lshrrev_b32 v28, 5, v1
        v_lshrrev_b32 v9, 1, v27
        v_and_b32 v9, 7, v9
        v_xor_b32 v9, v9, v28
        s_lshl_b32 s{sT0}, s{sT3}, 1
        v_xor_b32 v9, s{sT0}, v9
        v_lshlrev_b32 v9, 4, v9
        v_lshl_add_u32 v8, v27, 7, v9
        s_lshl_b32 s{sT0}, s{sRT}, 12
        v_add_u32 v8, s{sT0}, v8""")
        for i in range(1, 4): a(f"v_xor_b32 v{8+i}, {32*i}, v8")
        for i in range(4): a(f"v_add_u32 v{12+i}, 0x10000, v{8+i}")
        a(f"""v_and_b32 v29, 3, v2
        v_bfe_u32 v30, v1, 4, 1
        v_lshlrev_b32 v30, 5, v30
        v_lshl_add_u32 v30, v3, 3, v30
        v_lshl_add_u32 v31, v28, 3, v29
        s_mul_i32 s{sT0}, s{sCT}, 56
        v_add_u32 v16, s{sT0}, v30
        v_lshrrev_b32 v17, 1, v29
        v_lshlrev_b32 v17, 6, v17
        v_xor_b32 v16, v16, v17
        v_lshl_add_u32 v16, v31, 7, v16
        s_lshl_b32 s{sT0}, s{sT3}, 11
        s_add_u32 s{sT0}, s{sT0}, {LW}
        v_add_u32 v16, s{sT0}, v16""")
        for i in range(1, 4): a(f"v_xor_b32 v{16+i}, {2048*i}, v16")
        a(f"""v_lshl_add_u32 v80, v31, 6, v30
        s_lshl_b32 s{sT0}, s{sT3}, 10
        s_lshl_b32 s{sT1}, s{sTY}, 3
        s_xor_b32 s{sT4}, s{sT0}, 1024
        s_add_u32 s{sT0}, s{sT0}, s{sT1}
        s_add_u32 s{sT4}, s{sT4}, s{sT1}
        s_add_u32 s{sT0}, s{sT0}, {LWQ}
        s_add_u32 s{sT4}, s{sT4}, {LWQ}
        v_add_u32 v81, s{sT4}, v80
        v_add_u32 v80, s{sT0}, v80""")
        a(f"""v_bfe_u32 v2, v1, 1, 1
        v_and_b32 v3, 1, v1
        v_lshl_add_u32 v2, v2, 4, v3
        s_lshl_b32 s{sT0}, s{sP}, 5
        s_lshl_b32 s{sT1}, s{sWV}, 1
        s_add_u32 s{sT0}, s{sT0}, s{sT1}
        v_add_u32 v2, s{sT0}, v2
        v_lshlrev_b32 v82, 7, v2
        v_add_u32 v82, {FLAGA}, v82
        s_mov_b64 exec, 15
        buffer_load_dword v83, v82, s[{sWS}:{sWS+3}], 0 offen sc1
        s_mov_b64 exec, -1""")
        a(f"""s_lshl_b32 s{sT0}, s{sP}, 5
        v_add_u32 v84, s{sT0}, v27
        v_lshlrev_b32 v84, 5, v84
        v_add_u32 v84, {XTAB}, v84""")
        for i in range(20, 26): a(f"v_mov_b32 v{i}, 0")
        a("v_mov_b32 v26, 0x3f803f80")
        for i in range(112, 176): a(f"v_mov_b32 v{i}, 0")
        a(f"""s_lshl_b32 s{sT0}, s{sRT}, 9
        s_add_u32 s{sT0}, s{sT0}, {LST}
        v_lshl_add_u32 v86, v27, 4, s{sT0}
        s_lshl_b32 s{sT1}, s{sCT}, 3
        v_lshl_add_u32 v85, v28, 2, v86
        v_add_u32 v85, s{sT1}, v85
        s_lshl_b32 s{sT0}, s{sCT}, 9
        s_add_u32 s{sT0}, s{sT0}, {LCS}
        v_lshl_add_u32 v87, v27, 4, s{sT0}
        s_lshl_b32 s{sT1}, s{sRT}, 2
        v_add_u32 v88, s{sT1}, v87""")
        a(f"""s_mul_i32 s{sT0}, s{sCT}, {slot(5) - slot(0)}
        s_lshl_b32 s{sT1}, s{sRT}, 11
        s_add_u32 s{sT1}, s{sT1}, {slot(0)}
        s_add_u32 s{sT5}, s{sT0}, s{sT1}
        s_sub_u32 s{sT0}, {slot(5) - slot(0)}, s{sT0}
        s_add_u32 s{sT0}, s{sT0}, s{sT1}
        v_lshl_add_u32 v89, v27, 2, s{sT5}
        v_lshl_add_u32 v90, v28, 4, s{sT5}
        v_lshl_add_u32 v91, v1, 4, s{sT5}
        v_lshl_add_u32 v92, v1, 4, s{sT0}""")
        a(f"""s_lshl_b32 s{sT0}, s{sWV}, 7
        s_add_u32 s{sT0}, s{sT0}, {LCSQ}
        v_lshl_add_u32 v93, v27, 2, s{sT0}
        s_lshl_b32 s{sT0}, s{sRT}, 7
        s_lshl_b32 s{sT1}, s{sCT}, 6
        s_add_u32 s{sT0}, s{sT0}, s{sT1}
        s_add_u32 s{sT0}, s{sT0}, {LCSQ}
        v_lshl_add_u32 v94, v28, 4, s{sT0}""")
        a(f"""s_lshl_b32 s{sT0}, s{sP}, 1
        s_add_u32 s{sT0}, s{sT0}, s{sCT}
        s_lshl_b32 s{sT0}, s{sT0}, 6
        s_lshl_b32 s{sT1}, s{sRB}, 2
        s_add_u32 s{sT0}, s{sT0}, s{sT1}
        s_add_u32 s{sT0}, s{sT0}, s{sRT}
        s_lshl_b32 s{sT0}, s{sT0}, 12
        s_lshl_b32 s{sT1}, s{sTY}, 11
        s_add_u32 s{sT0}, s{sT0}, s{sT1}
        s_add_u32 s{sT4}, s{sT0}, {KV}""")
        a(f"""s_lshl_b32 s{sT0}, s{sH}, 3
        s_add_u32 s{sT0}, s{sT0}, s{sWV}
        s_lshl_b32 s{sT0}, s{sT0}, 15
        s_add_u32 s{sKV}, s{sT0}, {KV}""")
        for t in range(1, 8): a(f"s_add_u32 s{sKV+t}, s{sKV}, {4096*t}")
        self.extras()

    def extras(self):
        a = self.a
        a(f"""s_mov_b32 s{sTASK}, 0
        s_cmp_lg_u32 s{sWV}, 7
        s_cbranch_scc1 L_noextra
        s_cmp_eq_u32 s{sTY}, 0
        s_cbranch_scc1 L_notask
        s_cmp_lt_u32 s{sN}, 98
        s_cselect_b32 s{sTASK}, 1, 0""")
        self.srd(sA, 8, 448 * 896)
        a(f"""s_mul_i32 s{sT0}, s{sN}, 147
        s_lshr_b32 s{sT0}, s{sT0}, 10
        s_mul_i32 s{sT1}, s{sT0}, 7
        s_sub_u32 s{sT1}, s{sN}, s{sT1}
        s_mul_i32 s{sT0}, s{sT0}, {32*896}
        s_lshl_b32 s{sT1}, s{sT1}, 7
        s_add_u32 s{sT0}, s{sT0}, s{sT1}
        v_lshrrev_b32 v2, 3, v1
        v_and_b32 v3, 7, v1
        v_mul_u32_u24 v2, 896, v2
        v_lshl_add_u32 v2, v3, 4, v2""")
        for i in range(4):
            a(f"buffer_load_dwordx4 v[{176+4*i}:{179+4*i}], v2, s[{sA}:{sA+3}], s{sT0} offen")
            if i < 3: a(f"s_add_u32 s{sT0}, s{sT0}, {8*896}")
        a.label("L_notask")
        a(f"""s_waitcnt lgkmcnt(0)
        s_add_u32 s{sT1}, s{sE}, {EINC}
        v_mov_b32 v2, s{sT1}
        v_mov_b32 v3, s{sXCC}
        s_lshr_b32 s{sT0}, s{sT2}, 2
        s_add_u32 s{sT0}, s{sT0}, {XTAB}
        s_mov_b64 exec, 1
        buffer_store_dwordx2 v[2:3], v20, s[{sWS}:{sWS+3}], s{sT0} offen sc1
        s_mov_b64 exec, -1""")
        a.label("L_noextra")

    def p1_loop(self, ty):
        a = self.a
        ACC, XF, WF = 32, 48, 64
        waits = [18, 15, 13, 11, 9, 8, 5]
        extra = 1 if ty == 0 else 5
        for c in range(7):
            if c < 6:
                lab = a.newlabel("L_w7")
                a(f"s_waitcnt vmcnt({waits[c] + extra})\ns_cmp_eq_u32 s{sWV}, 7\ns_cbranch_scc1 {lab}\ns_waitcnt vmcnt({waits[c]})")
                a.label(lab)
            else:
                a(f"s_waitcnt vmcnt({waits[c]})")
            a("s_barrier")
            if c == 0: self.stamp(1)
            xa = 8 if c < 4 else 12
            xo = (c % 4) * 16384
            wo = (c % 6) * 8192
            for i in range(4):
                a(f"ds_read_b128 {v(XF+4*i,4)}, v{xa+i} offset:{xo}")
                a(f"ds_read_b64_tr_b16 {v(WF+4*i,2)}, v{16+i} offset:{wo}")
                a(f"ds_read_b64_tr_b16 {v(WF+4*i+2,2)}, v{16+i} offset:{wo+512}")
            if c == 1:
                a(f"""s_add_u32 m0, s{sM1}, {slot(0)}
                s_mov_b32 s{sT0}, {6*64*2688}
                buffer_load_dwordx4 v6, s[{sW}:{sW+3}], s{sT0} offen lds""")
            elif 2 <= c <= 5:
                q = c - 2
                if q == 2:
                    a(f"buffer_load_dwordx2 v[96:97], v84, s[{sWS}:{sWS+3}], 0 offen sc1")
                if q < 3:
                    a(f"""s_add_u32 m0, s{sM1}, {slot(1+q)}
                    s_mov_b32 s{sT0}, {q*128*2688}
                    buffer_load_dwordx4 v7, s[{sW}:{sW+3}], s{sT0} offen lds""")
                else:
                    a(f"""s_lshr_b32 s{sT0}, s{sM1}, 1
                    s_add_u32 m0, s{sT0}, {slot(4)}
                    s_mul_i32 s{sT0}, s{sWV}, {8*2688}
                    s_sub_u32 s{sT0}, {384*2688}, s{sT0}
                    s_mov_b32 exec_hi, 0
                    buffer_load_dwordx4 v7, s[{sW}:{sW+3}], s{sT0} offen lds
                    s_mov_b32 exec_hi, -1""")
            for i in range(4):
                a(f"s_waitcnt lgkmcnt({9-3*i})")
                A, B = (WF + 4*i, XF + 4*i) if ty == 0 else (XF + 4*i, WF + 4*i)
                a(f"v_mfma_f32_32x32x16_bf16 {v(ACC,16)}, {v(A,4)}, {v(B,4)}, {'0' if (c == 0 and i == 0) else v(ACC,16)}")
                if i < 2:
                    for j in range(4):
                        a(f"v_dot2c_f32_bf16 v{20+(j&1)}, v{XF+4*i+j}, v26")
                        a(f"v_dot2c_f32_bf16 v{22+(j&1)}, v{XF+4*i+j}, v{XF+4*i+j}")
                elif i == 2:
                    for j in range(4):
                        a(f"v_dot2c_f32_bf16 v{24+(j&1)}, v{WF+4*i+j}, v26")
            if c == 0: a(f"s_add_u32 s{sE}, s{sE}, {EINC}")
        self.stamp(2)
        a(f"""v_add_f32 v20, v20, v21
        v_add_f32 v22, v22, v23
        v_add_f32 v24, v24, v25
        s_nop 0
        v_mov_b32 v25, v24
        v_permlane32_swap_b32 v20, v22
        s_nop 0
        v_permlane32_swap_b32 v24, v25
        v_add_f32 v20, v20, v22
        v_add_f32 v24, v24, v25
        ds_write_b32 v85, v20
        ds_write_b32 v88, v24
        s_waitcnt lgkmcnt(0)
        s_barrier
        ds_read_b128 v[48:51], v86
        ds_read_b128 v[52:55], v87""")
        OUT = 64
        if ty == 0:
            a(f"""v_and_b32 v2, 0x33, v1
            v_bfe_u32 v3, v1, 2, 1
            v_lshl_or_b32 v2, v3, 3, v2
            v_bfe_u32 v3, v1, 3, 1
            v_lshl_or_b32 v2, v3, 2, v2
            v_lshlrev_b32 v95, 4, v2
            v_mov_b32 v{OUT+6}, 0
            v_mov_b32 v{OUT+7}, 0""")
        else:
            a(f"""v_lshlrev_b32 v95, 4, v1
            v_cmp_eq_u32 vcc, 28, v27
            v_mov_b32 v2, 0
            s_nop 0
            v_cndmask_b32 v{OUT}, v2, v26, vcc""")
            for i in range(1, 8): a(f"v_mov_b32 v{OUT+i}, v{OUT}")
        a(f"""s_waitcnt lgkmcnt(0)
        v_add_f32 v52, v52, v53
        v_add_f32 v54, v54, v55
        v_add_f32 v48, v48, v50
        v_add_f32 v52, v52, v54
        v_add_f32 v49, v49, v51""")
        if ty == 0:
            a("ds_write_b32 v89, v52")
        self.ln_stats(48, 49, 98, 99, 50)
        if ty == 0:
            a("s_waitcnt lgkmcnt(0)")
            for g in range(4): a(f"ds_read_b128 {v(48+4*g,4)}, v90 offset:{32*g}")
            for g in range(4):
                a(f"s_waitcnt lgkmcnt({3-g})")
                for r in range(4): a(f"v_fma_f32 v{32+4*g+r}, -v98, v{48+4*g+r}, v{32+4*g+r}")
                for r in range(4): a(f"v_mul_f32 v{32+4*g+r}, v99, v{32+4*g+r}")
                if g == 3: a("s_mov_b32 exec_hi, 0")
                a(f"v_cvt_pk_bf16_f32 v{OUT+2*g}, v{32+4*g}, v{33+4*g}")
                a(f"v_cvt_pk_bf16_f32 v{OUT+2*g+1}, v{34+4*g}, v{35+4*g}")
                if g == 3: a("s_mov_b64 exec, -1")
        else:
            a(f"""v_mul_f32 v51, v98, v99
            ds_write_b32 v89, v99
            ds_write_b32 v89, v51 offset:128
            s_mov_b32 s{sMSK}, 0x0fffffff
            s_mov_b32 s{sMSK+1}, 0x0fffffff
            s_waitcnt lgkmcnt(0)""")
            RR, MM = 100, 72
            for half in range(2):
                for g in (2*half, 2*half+1):
                    k = g % 2
                    a(f"ds_read_b128 {v(RR+4*k,4)}, v90 offset:{32*g}")
                    a(f"ds_read_b128 {v(MM+4*k,4)}, v90 offset:{128+32*g}")
                for g in (2*half, 2*half+1):
                    k = g % 2
                    a(f"s_waitcnt lgkmcnt({2-2*k})")
                    for r in range(4): a(f"v_mul_f32 v{MM+4*k+r}, v52, v{MM+4*k+r}")
                    for r in range(4): a(f"v_fma_f32 v{32+4*g+r}, v{32+4*g+r}, v{RR+4*k+r}, -v{MM+4*k+r}")
            a(f"s_mov_b64 exec, s[{sMSK}:{sMSK+1}]")
            for j in range(8): a(f"v_cvt_pk_bf16_f32 v{OUT+j}, v{32+2*j}, v{33+2*j}")
            a("s_mov_b64 exec, -1")

    def p1_store(self):
        a = self.a
        OUT = 64
        a(f"s_mov_b32 s{sFAST}, 0")
        if self.fast:
            a(f"""s_waitcnt vmcnt(2)
            v_cmp_ne_u32 s[{sMSK}:{sMSK+1}], s{sE}, v96
            v_cmp_ne_u32 s[{sMS2}:{sMS2+1}], s{sXCC}, v97
            s_nop 0
            s_or_b64 s[{sMSK}:{sMSK+1}], s[{sMSK}:{sMSK+1}], s[{sMS2}:{sMS2+1}]
            s_cbranch_scc1 L_st_slow
            s_mov_b32 s{sFAST}, 1
            buffer_store_dwordx4 {v(OUT,4)}, v95, s[{sWS}:{sWS+3}], s{sT4} offen
            buffer_store_dwordx4 {v(OUT+4,4)}, v95, s[{sWS}:{sWS+3}], s{sT4} offen offset:1024
            s_branch L_st_done""")
        a.label("L_st_slow")
        a(f"""buffer_store_dwordx4 {v(OUT,4)}, v95, s[{sWS}:{sWS+3}], s{sT4} offen sc1
        buffer_store_dwordx4 {v(OUT+4,4)}, v95, s[{sWS}:{sWS+3}], s{sT4} offen offset:1024 sc1""")
        a.label("L_st_done")
        self.stamp(3)

    def q_pass(self):
        a = self.a
        ACC, XF, WF = 32, 48, 100
        a("s_waitcnt vmcnt(2)\ns_barrier")
        a("v_mov_b32 v24, 0\nv_mov_b32 v25, 0")
        def reads(c):
            xa = 8 if c < 4 else 12
            xo = (c % 4) * 16384
            b = c % 2
            for i in range(2):
                a(f"ds_read_b128 {v(48+8*b+4*i,4)}, v{xa+i} offset:{xo}")
                wf = (72 if b == 0 else 100) + 4*i
                a(f"ds_read_b64_tr_b16 {v(wf,2)}, v{80+i} offset:{c*4096}")
                a(f"ds_read_b64_tr_b16 {v(wf+2,2)}, v{80+i} offset:{c*4096+256}")
        reads(0)
        for c in range(7):
            if c < 6: reads(c + 1)
            b = c % 2
            for i in range(2):
                rem = (6 if c < 6 else 0) + 3 * (1 - i)
                a(f"s_waitcnt lgkmcnt({rem})")
                wf = (72 if b == 0 else 100) + 4*i
                xf = 48 + 8*b + 4*i
                a(f"v_mfma_f32_32x32x16_bf16 {v(ACC,16)}, {v(wf,4)}, {v(xf,4)}, {'0' if (c == 0 and i == 0) else v(ACC,16)}")
                for j in range(4): a(f"v_dot2c_f32_bf16 v{24+(j&1)}, v{wf+j}, v26")
            if c == 2:
                a(f"""s_waitcnt vmcnt(0)
                s_barrier
                s_cmp_lg_u32 s{sWV}, 0
                s_cbranch_scc1 L_noflag
                v_mov_b32 v2, s{sE}
                v_mov_b32 v3, 0
                s_add_u32 s{sT0}, s{sT2}, {FLAGA}
                s_mov_b64 exec, 1
                s_cmp_eq_u32 s{sFAST}, 0
                s_cbranch_scc1 L_flag_slow
                buffer_store_dword v2, v3, s[{sWS}:{sWS+3}], s{sT0} offen
                s_branch L_flag_done""")
                a.label("L_flag_slow")
                a(f"buffer_store_dword v2, v3, s[{sWS}:{sWS+3}], s{sT0} offen sc1")
                a.label("L_flag_done")
                a("s_mov_b64 exec, -1")
                a.label("L_noflag")
                self.stamp(4)
        a(f"""s_nop 2
        v_add_f32 v24, v24, v25
        v_mov_b32 v25, v24
        s_nop 1
        v_permlane32_swap_b32 v24, v25
        v_add_f32 v24, v24, v25
        ds_write_b32 v93, v24
        s_cmp_eq_u32 s{sCT}, 0
        s_cbranch_scc1 L_qx0
        ds_write_b128 v91, v[32:35]
        ds_write_b128 v91, v[36:39] offset:1024""")
        for i in range(8): a(f"v_mov_b32 v{32+i}, v{40+i}")
        a("s_branch L_qx1")
        a.label("L_qx0")
        a("ds_write_b128 v91, v[40:43]\nds_write_b128 v91, v[44:47] offset:1024")
        a.label("L_qx1")
        a(f"""s_waitcnt lgkmcnt(0)
        s_barrier
        ds_read_b128 v[40:43], v92
        ds_read_b128 v[44:47], v92 offset:1024
        ds_read_b128 v[48:51], v94
        ds_read_b128 v[52:55], v94 offset:32
        ds_read_b128 v[56:59], v94 offset:512
        ds_read_b128 v[60:63], v94 offset:544
        v_mul_f32 v99, {hx(f32(28 ** -0.5 * math.log2(math.e)))}, v99
        v_mov_b32 v66, 0
        v_mov_b32 v67, 0
        s_lshl_b32 s{sT0}, s{sRT}, 11
        s_lshl_b32 s{sT1}, s{sCT}, 10
        s_add_u32 s{sT0}, s{sT0}, s{sT1}
        s_add_u32 s{sT0}, s{sT0}, {LQF}
        v_lshl_add_u32 v2, v1, 4, s{sT0}
        s_cmp_eq_u32 s{sCT}, 0
        s_cselect_b32 s{sMSK+1}, -1, 0
        s_mov_b32 s{sMSK}, -1
        s_waitcnt lgkmcnt(0)""")
        for r in range(8): a(f"v_add_f32 v{32+r}, v{32+r}, v{40+r}")
        for r in range(8): a(f"v_add_f32 v{48+r}, v{48+r}, v{56+r}")
        for r in range(8): a(f"v_fma_f32 v{32+r}, -v98, v{48+r}, v{32+r}")
        for r in range(8): a(f"v_mul_f32 v{32+r}, v99, v{32+r}")
        a(f"""v_cvt_pk_bf16_f32 v64, v32, v33
        v_cvt_pk_bf16_f32 v65, v34, v35
        s_mov_b64 exec, s[{sMSK}:{sMSK+1}]
        v_cvt_pk_bf16_f32 v66, v36, v37
        v_cvt_pk_bf16_f32 v67, v38, v39
        s_mov_b64 exec, -1
        ds_write_b128 v2, v[64:67]""")
        a(f"s_cmp_eq_u32 s{sTASK}, 0\ns_cbranch_scc1 L_notask2")
        PB = 7 * 16384 - 65536
        a(f"v_lshlrev_b32 v3, 4, v1")
        for i in range(4): a(f"ds_write_b128 v3, {v(176+4*i,4)} offset:{PB + 1024*i}")
        a(f"""v_lshrrev_b32 v4, 4, v1
        v_bfe_u32 v5, v1, 2, 2
        v_lshl_add_u32 v4, v4, 3, v5
        v_and_b32 v5, 3, v1
        v_lshlrev_b32 v5, 4, v5
        v_lshl_add_u32 v4, v4, 7, v5
        s_lshl_b32 s{sT0}, s{sN}, 12
        s_add_u32 s{sT0}, s{sT0}, {WOT}
        s_waitcnt lgkmcnt(0)""")
        for tau in range(4):
            o = PB + 64 * (tau // 2) + 8 * (tau % 2)
            a(f"ds_read_b64_tr_b16 {v(176+4*tau,2)}, v4 offset:{o}")
            a(f"ds_read_b64_tr_b16 {v(178+4*tau,2)}, v4 offset:{o+512}")
        a("s_waitcnt lgkmcnt(0)")
        for tau in range(4):
            a(f"buffer_store_dwordx4 {v(176+4*tau,4)}, v3, s[{sWS}:{sWS+3}], s{sT0} offen offset:{1024*tau} sc1")
        a.label("L_notask2")
        a("s_waitcnt lgkmcnt(0)\ns_barrier")
        self.stamp(5)

    def spin(self, name, loads, checkf, sleep=1):
        a = self.a
        a(f"s_mov_b32 s{sSPIN}, 0")
        a.label(f"L_{name}_poll")
        loads()
        a(f"s_add_u32 s{sSPIN}, s{sSPIN}, 1\ns_waitcnt vmcnt(0)")
        checkf()
        a(f"""s_cbranch_scc0 L_{name}_ok
        s_cmp_ge_u32 s{sSPIN}, {SPIN_MAX}
        s_cbranch_scc1 L_{name}_ok""")
        if sleep: a(f"s_sleep {sleep}")
        a(f"s_branch L_{name}_poll")
        a.label(f"L_{name}_ok")

    def attention(self):
        a = self.a
        Q, K, V, S, O = 16, 48, 64, 80, 112
        IDX, LO = 14, 15
        a(f"v_lshlrev_b32 v{LO}, 4, v1\nv_mov_b32 v13, v82\nv_mov_b32 v{IDX}, 0xdddddddd")
        a(f"v_add_u32 v2, {LQF}, v{LO}")
        for i in range(8): a(f"ds_read_b128 {v(Q+4*i,4)}, v2 offset:{1024*i}")
        def loads():
            a(f"buffer_load_dword v12, v13, s[{sWS}:{sWS+3}], 0 offen sc1")
        def chk():
            a(f"v_cmp_ne_u32 s[{sMSK}:{sMSK+1}], s{sE}, v12\ns_nop 0\ns_and_b64 s[{sMSK}:{sMSK+1}], s[{sMSK}:{sMSK+1}], exec")
        a("s_mov_b64 exec, 15")
        self.spin("kv", loads, chk)
        a("s_mov_b64 exec, -1")
        self.stamp(6)
        def ldk(t):
            b = t % 2
            return [f"buffer_load_dwordx4 {v(K+8*b+4*i,4)}, v{LO}, s[{sWS}:{sWS+3}], s{sKV+t} offen offset:{1024*i} sc1" for i in range(2)]
        def ldv(t):
            b = t % 2
            return [f"buffer_load_dwordx4 {v(V+8*b+4*i,4)}, v{LO}, s[{sWS}:{sWS+3}], s{sKV+t} offen offset:{2048+1024*i} sc1" for i in range(2)]
        for x in ldk(0) + ldv(0) + ldk(1) + ldv(1): a(x)
        a(f"""s_cmp_eq_u32 s{sTASK}, 0
        s_cbranch_scc1 L_notask3
        v_mov_b32 v2, s{sE}
        v_mov_b32 v3, 0
        s_lshl_b32 s{sT0}, s{sN}, 7
        s_add_u32 s{sT0}, s{sT0}, {FLAGW}
        s_mov_b64 exec, 1
        buffer_store_dword v2, v3, s[{sWS}:{sWS+3}], s{sT0} offen sc1
        s_mov_b64 exec, -1""")
        a.label("L_notask3")
        def qk(n, half):
            t, q = divmod(n, 4); sb = S + 16 * (n % 2); kb = K + 8 * (t % 2)
            c = "0" if half == 0 else v(sb, 16)
            return f"v_mfma_f32_32x32x16_bf16 {v(sb,16)}, {v(kb+4*half,4)}, {v(Q+8*q+4*half,4)}, {c}"
        def pv(n, half):
            t, q = divmod(n, 4); sb = S + 16 * (n % 2); vb = V + 8 * (t % 2)
            return f"v_smfmac_f32_32x32x32_bf16 {v(O+16*q,16)}, {v(vb+4*half,4)}, {v(sb+8*half,8)}, v{IDX}"
        a("s_waitcnt vmcnt(6) lgkmcnt(0)")
        a(qk(0, 0)); a(qk(0, 1))
        a("s_nop 11")
        a("s_waitcnt vmcnt(4)")
        self.stamp(7)
        N = 32
        for n in range(N):
            t, q = divmod(n, 4)
            sb = S + 16 * (n % 2)
            e = [f"v_exp_f32 v{sb+i}, v{sb+i}" for i in range(16)]
            seq = [e[0], e[1]]
            if n > 0: seq.append(pv(n - 1, 1))
            if q == 0 and 1 <= t <= 6: seq += ldv(t + 1)
            seq.append(e[2])
            if n + 1 < N:
                if q == 3:
                    seq.append(f"s_waitcnt vmcnt({(2 if t + 2 <= 7 else 0) + 2})")
                seq.append(qk(n + 1, 0))
            seq += [e[3], e[4]]
            if n + 1 < N: seq.append(qk(n + 1, 1))
            if q == 2 and t + 2 <= 7: seq += ldk(t + 2)
            seq += e[5:10]
            if q == 0 and t >= 1:
                seq.append(f"s_waitcnt vmcnt({4 if t <= 6 else 0})")
            seq.append(pv(n, 0))
            seq += e[10:16]
            for x in seq: a(x)
        a("s_nop 1")
        a(pv(N - 1, 1))
        self.stamp(8)

    def reduce_publish(self):
        a = self.a
        O = 112
        a(f"s_lshl_b32 s{sT0}, s{sWV}, 14\nv_add_u32 v2, s{sT0}, v15")
        for i in range(12): a(f"ds_write_b128 v2, {v(O+4*i,4)} offset:{1024*i}")
        for i in range(12, 16): a(f"ds_write_b128 v2, {v(O+4*i,4)} offset:{1024*i}")
        a(f"""s_lshr_b32 s{sT0}, s{sWV}, 1
        s_lshl_b32 s{sT0}, s{sT0}, 12
        s_and_b32 s{sT1}, s{sWV}, 1
        s_lshl_b32 s{sT1}, s{sT1}, 8
        s_add_u32 s{sT0}, s{sT0}, s{sT1}
        v_lshrrev_b32 v4, 4, v1
        v_and_b32 v5, 15, v1
        v_lshlrev_b32 v5, 4, v5
        v_lshl_add_u32 v2, v4, 10, v5
        v_add_u32 v2, s{sT0}, v2
        v_add_u32 v3, 0x10000, v2
        v_lshl_add_u32 v6, v4, 9, v5
        s_lshl_b32 s{sT0}, s{sRB}, 3
        s_add_u32 s{sT0}, s{sT0}, s{sWV}
        s_mul_i32 s{sT0}, s{sT0}, 28672
        s_mul_i32 s{sT1}, s{sH}, 1792
        s_add_u32 s{sT0}, s{sT0}, s{sT1}
        s_add_u32 s{sT3}, s{sT0}, {OG}
        s_waitcnt lgkmcnt(0)
        s_barrier""")
        def rd(src):
            ad = 2 if src < 4 else 3
            a(f"ds_read_b128 {v(O+8*src,4)}, v{ad} offset:{(src%4)*16384}")
            a(f"ds_read_b128 {v(O+8*src+4,4)}, v{ad} offset:{(src%4)*16384+512}")
        for src in range(7): rd(src)
        for src in range(1, 8):
            if src == 1:
                a("s_waitcnt lgkmcnt(10)");
            elif src == 2:
                rd(7); a("s_waitcnt lgkmcnt(10)")
            else:
                a(f"s_waitcnt lgkmcnt({2*(7-src)})")
            for r in range(0, 8, 2):
                a(f"v_pk_add_f32 {v(O+r,2)}, {v(O+r,2)}, {v(O+8*src+r,2)}")
        a("s_barrier")
        a.label("L_norm")
        a(f"""v_mov_b32 v7, v{O+4}
        v_mov_b32 v8, v{O+4}
        s_nop 1
        v_permlane32_swap_b32 v7, v8
        v_mov_b32 v7, v8
        s_nop 1
        v_permlane16_swap_b32 v7, v8
        v_rcp_f32 v7, v8""")
        lo, hi = (f32(2.0 ** -40), f32(2.0 ** 40)) if not self.force_slow else (f32(1e30), f32(2e30))
        a(f"""v_cmp_nlt_f32 vcc, {hx(lo)}, v8
        s_mov_b64 s[{sMSK}:{sMSK+1}], vcc
        v_cmp_ngt_f32 vcc, {hx(hi)}, v8
        s_or_b64 s[{sMSK}:{sMSK+1}], s[{sMSK}:{sMSK+1}], vcc
        s_cbranch_scc1 L_slow""")
        a.label("L_norm2")
        for r in range(8): a(f"v_mul_f32 v{O+r}, v7, v{O+r}")
        a(f"""v_mov_b32 v{O+9}, s{sE}
        v_mov_b32 v{O+11}, s{sE}
        v_mov_b32 v{O+13}, s{sE}
        v_mov_b32 v{O+15}, s{sE}""")
        for j in range(4): a(f"v_cvt_pk_bf16_f32 v{O+8+2*j}, v{O+2*j}, v{O+2*j+1}")
        a(f"""buffer_store_dwordx4 {v(O+8,4)}, v6, s[{sWS}:{sWS+3}], s{sT3} offen sc1
        s_mov_b32 exec_hi, 0xffff
        buffer_store_dwordx4 {v(O+12,4)}, v6, s[{sWS}:{sWS+3}], s{sT3} offen offset:256 sc1
        s_mov_b32 exec_hi, -1""")
        self.stamp(9)

    def slow_path(self):
        a = self.a
        Q, K, V, S, O2, M = 128, 136, 144, 152, 96, 9
        a.label("L_slow")
        a(f"""s_lshl_b32 s{sT0}, s{sP}, 5
        v_and_b32 v10, 31, v1
        v_add_u32 v10, s{sT0}, v10
        v_lshlrev_b32 v10, 7, v10
        v_add_u32 v10, {FLAGA}, v10""")
        self.spin("slowf", lambda: a(f"buffer_load_dword v12, v10, s[{sWS}:{sWS+3}], 0 offen sc1"),
                  lambda: a(f"v_cmp_ne_u32 s[{sMSK}:{sMSK+1}], s{sE}, v12\ns_nop 0\ns_and_b64 s[{sMSK}:{sMSK+1}], s[{sMSK}:{sMSK+1}], exec"))
        a(f"""s_lshr_b32 s{sT0}, s{sWV}, 1
        s_lshl_b32 s{sT0}, s{sT0}, 11
        s_add_u32 s{sT0}, s{sT0}, {LQF}
        v_add_u32 v10, s{sT0}, v15
        ds_read_b128 {v(Q,4)}, v10
        ds_read_b128 {v(Q+4,4)}, v10 offset:1024
        v_mov_b32 v{M}, 0xff800000
        s_lshl_b32 s{sT1}, s{sH}, 18
        s_add_u32 s{sT1}, s{sT1}, {KV}
        s_mov_b32 s{sT0}, s{sT1}
        s_add_u32 s{sT4}, s{sT1}, {64*4096}
        s_waitcnt lgkmcnt(0)""")
        a.label("L_slow1")
        a(f"""buffer_load_dwordx4 {v(K,4)}, v15, s[{sWS}:{sWS+3}], s{sT0} offen sc1
        buffer_load_dwordx4 {v(K+4,4)}, v15, s[{sWS}:{sWS+3}], s{sT0} offen offset:1024 sc1
        s_waitcnt vmcnt(0)
        v_mfma_f32_32x32x16_bf16 {v(S,16)}, {v(K,4)}, {v(Q,4)}, 0
        v_mfma_f32_32x32x16_bf16 {v(S,16)}, {v(K+4,4)}, {v(Q+4,4)}, {v(S,16)}
        s_nop 11""")
        for i in range(0, 16, 2): a(f"v_max3_f32 v{M}, v{M}, v{S+i}, v{S+i+1}")
        a(f"""s_add_u32 s{sT0}, s{sT0}, 4096
        s_cmp_lt_u32 s{sT0}, s{sT4}
        s_cbranch_scc1 L_slow1
        v_mov_b32 v10, v{M}
        s_nop 1
        v_permlane32_swap_b32 v10, v{M}
        v_max_f32 v{M}, v{M}, v10
        s_mov_b32 s{sT0}, s{sT1}""")
        for i in range(16): a(f"v_mov_b32 v{O2+i}, 0")
        a.label("L_slow2")
        a(f"""buffer_load_dwordx4 {v(K,4)}, v15, s[{sWS}:{sWS+3}], s{sT0} offen sc1
        buffer_load_dwordx4 {v(K+4,4)}, v15, s[{sWS}:{sWS+3}], s{sT0} offen offset:1024 sc1
        buffer_load_dwordx4 {v(V,4)}, v15, s[{sWS}:{sWS+3}], s{sT0} offen offset:2048 sc1
        buffer_load_dwordx4 {v(V+4,4)}, v15, s[{sWS}:{sWS+3}], s{sT0} offen offset:3072 sc1
        s_waitcnt vmcnt(0)
        v_mfma_f32_32x32x16_bf16 {v(S,16)}, {v(K,4)}, {v(Q,4)}, 0
        v_mfma_f32_32x32x16_bf16 {v(S,16)}, {v(K+4,4)}, {v(Q+4,4)}, {v(S,16)}
        s_nop 11""")
        for i in range(16): a(f"v_sub_f32 v{S+i}, v{S+i}, v{M}")
        for i in range(16): a(f"v_exp_f32 v{S+i}, v{S+i}")
        a(f"""s_nop 1
        v_smfmac_f32_32x32x32_bf16 {v(O2,16)}, {v(V,4)}, {v(S,8)}, v14
        v_smfmac_f32_32x32x32_bf16 {v(O2,16)}, {v(V+4,4)}, {v(S+8,8)}, v14
        s_add_u32 s{sT0}, s{sT0}, 4096
        s_cmp_lt_u32 s{sT0}, s{sT4}
        s_cbranch_scc1 L_slow2
        s_nop 11""")
        a(f"""s_add_u32 s{sT0}, s{sM0}, {LSLOW}
        v_lshrrev_b32 v10, 5, v1
        v_lshl_add_u32 v10, v10, 8, v5
        v_add_u32 v10, s{sT0}, v10
        s_and_b32 s{sT1}, s{sWV}, 1
        s_lshl_b32 s{sT1}, s{sT1}, 4
        s_lshl_b32 s{sMSK}, 0xffff, s{sT1}
        s_mov_b32 exec_lo, s{sMSK}
        s_mov_b32 exec_hi, s{sMSK}""")
        for g in range(4): a(f"ds_write_b128 v10, {v(O2+4*g,4)} offset:{512*g}")
        a(f"""s_mov_b64 exec, -1
        v_add_u32 v10, s{sT0}, v6
        s_waitcnt lgkmcnt(0)
        ds_read_b128 v[112:115], v10
        ds_read_b128 v[116:119], v10 offset:256
        s_waitcnt lgkmcnt(0)
        v_mov_b32 v7, v116
        v_mov_b32 v8, v116
        s_nop 1
        v_permlane32_swap_b32 v7, v8
        v_mov_b32 v7, v8
        s_nop 1
        v_permlane16_swap_b32 v7, v8
        v_rcp_f32 v7, v8
        s_nop 0
        s_branch L_norm2""")

    def diag_out(self):
        a = self.a
        if not self.diag: return
        a(f"""s_lshl_b32 s{sT0}, s2, 3
        s_add_u32 s{sT0}, s{sT0}, s{sWV}
        s_lshl_b32 s{sT0}, s{sT0}, 6
        s_add_u32 s{sT0}, s{sT0}, {DIAG}
        s_mov_b64 exec, 1
        v_mov_b32 v2, 0""")
        for i in range(16): a(f"v_mov_b32 v{16+i}, s{sDG+i}")
        for i in range(4): a(f"buffer_store_dwordx4 {v(16+4*i,4)}, v2, s[{sWS}:{sWS+3}], s{sT0} offen offset:{16*i}")
        a("s_waitcnt vmcnt(0)")

    def build(self):
        import gen_tail
        a = self.a
        if self.diag:
            for i in range(16): a(f"s_mov_b32 s{sDG+i}, 0")
        self.prologue()
        a(f"s_cmp_eq_u32 s{sTY}, 1\ns_cbranch_scc1 L_p1v")
        self.p1_loop(0)
        a("s_branch L_p1j")
        a.label("L_p1v")
        self.p1_loop(1)
        a.label("L_p1j")
        self.p1_store()
        self.q_pass()
        self.attention()
        self.reduce_publish()
        if self.stop >= 3:
            gen_tail.tail(self)
        a.label("L_fin")
        self.diag_out()
        a.label("L_end")
        a("s_endpgm")
        self.slow_path()
        return self.finish()

    def finish(self):
        probs = check(self.a.lines)
        hdr = open("cdna_kernels/" + NAME + ".s.ref").read().split("; Override launch")[0]
        k = NAME + "_kernel"
        txt = hdr + f"""; @launch grid=(256,1,1) block=(512,1,1) lds={LDS_BYTES}
.amdgcn_target "amdgcn-amd-amdhsa--gfx950"
.text
.globl {k}
.p2align 8
.type {k},@function
{k}:
""" + self.a.text() + f""".section .rodata,"a"
.p2align 6
.amdhsa_kernel {k}
  .amdhsa_next_free_vgpr 256
  .amdhsa_next_free_sgpr 102
  .amdhsa_accum_offset 256
  .amdhsa_group_segment_fixed_size 0
  .amdhsa_kernarg_size 88
  .amdhsa_user_sgpr_count 2
  .amdhsa_user_sgpr_kernarg_segment_ptr 1
  .amdhsa_system_sgpr_workgroup_id_x 1
  .amdhsa_float_denorm_mode_32 3
.end_amdhsa_kernel
"""
        return txt, probs

if __name__ == "__main__":
    import argparse
    ap = argparse.ArgumentParser()
    ap.add_argument("-o", default="k.s")
    ap.add_argument("--diag", action="store_true")
    ap.add_argument("--stop", type=int, default=99)
    ap.add_argument("--nofast", action="store_true")
    ap.add_argument("--force-slow", action="store_true")
    A = ap.parse_args()
    txt, probs = G(diag=A.diag, stop=A.stop, fast=not A.nofast, force_slow=A.force_slow).build()
    open(A.o, "w").write(txt)
    print("written", A.o, "hazards:", len(probs))
```
